```python
import torch

def _softmax(x, axis=-1):
    return torch.softmax(x, dim=axis)

def _gelu(x):
    return torch.nn.functional.gelu(x, approximate='tanh')

def _silu(x):
    return torch.nn.functional.silu(x)

def _sigmoid(x):
    return torch.sigmoid(x)

def _layernorm(x, axis=-1, eps=1e-05):
    m = x.mean(dim=axis, keepdim=True)
    v = x.var(dim=axis, keepdim=True, unbiased=False)
    return (x - m) / torch.sqrt(v + eps)

def _scatter_add(tgt, idx, src, axis=0):
    return tgt.clone().index_add_(axis, idx, src)

def _segment_sum(src, seg, n):
    out = torch.zeros((n,) + src.shape[1:], dtype=src.dtype)
    return out.index_add_(0, seg, src)

def _pad(x, pw):
    flat = tuple((v for pair in reversed(pw) for v in pair))
    return torch.nn.functional.pad(x, flat)
kernel_name = 'standalone__dit_adaln_block__diffusion'

def setup_inputs():

    _w = lambda a: (lambda t: t.to(torch.bfloat16) if t.is_floating_point() else t)(torch.as_tensor(a))
    B, N, D = (2, 1024, 384)
    return {'x': _w((lambda *s: torch.randn(*s, dtype=torch.bfloat16) * 0.05)(B, N, D)), 'c': _w((lambda *s: torch.randn(*s, dtype=torch.bfloat16) * 0.2)(B, D)), 'wqkv': _w((lambda *s: torch.randn(*s, dtype=torch.bfloat16) * 0.05)(D, 3 * D)), 'wo': _w((lambda *s: torch.randn(*s, dtype=torch.bfloat16) * 0.1)(D, D)), 'w_mod': _w((lambda *s: torch.randn(*s, dtype=torch.bfloat16) * 0.2)(D, 6 * D))}

def reference(x, c, wqkv, wo, w_mod):
    B, N, D = x.shape
    mod = (_silu(c) @ w_mod).reshape(B, 6, 1, D)
    shift_a, scale_a, gate_a, shift_m, scale_m, gate_m = [mod[:, i] for i in range(6)]
    h = _layernorm(x, axis=-1) * (1 + scale_a) + shift_a
    qkv = h @ wqkv
    q, k, v = (qkv[..., :D].clone(), qkv[..., D:2 * D].clone(), qkv[..., 2 * D:].clone())
    p = _softmax(torch.einsum('bqd,bkd->bqk', q, k) * D ** (-0.5), axis=-1)
    a = torch.einsum('bqk,bkd->bqd', p, v) @ wo
    return x + gate_a * a
```

```python
import sys
MOD_OFF=0
WF_OFF=0x4000
XF_OFF=0x100000
TF_OFF=0x280000
VF_OFF=0x400000
ST_OFF=0x580000
OP_OFF=0x600000
WS_USED=0x1200000
QSCALE=(384**-0.5)*1.4426950408889634
import struct
def f32(x): return '0x%08x'%struct.unpack('<I',struct.pack('<f',x))[0]

class Asm:
    def __init__(s): s.L=[]
    def __call__(s,t):
        for l in t.strip('\n').split('\n'):
            l=l.strip()
            if not l: continue
            s.L.append(l if l.endswith(':') else '    '+l)
    def text(s): return '\n'.join(s.L)+'\n'

def vr(b,n): return 'v[%d:%d]'%(b,b+n-1)
def ar(b,n): return 'a[%d:%d]'%(b,b+n-1)

def srd(A,d,plo,size):
    A(f'''s_mov_b32 s{d}, s{plo}
    s_and_b32 s{d+1}, s{plo+1}, 0xffff
    s_mov_b32 s{d+2}, {size}
    s_mov_b32 s{d+3}, 0x20000''')

def kernel_header(A,name):
    A.L.append(f'.globl {name}')
    A.L.append('.p2align 8')
    A.L.append(f'.type {name},@function')
    A.L.append(f'{name}:')

def kd(name,vgpr,sgpr,accum):
    return f'''.amdhsa_kernel {name}
  .amdhsa_next_free_vgpr {vgpr}
  .amdhsa_next_free_sgpr {sgpr}
  .amdhsa_accum_offset {accum}
  .amdhsa_group_segment_fixed_size 0
  .amdhsa_kernarg_size 64
  .amdhsa_user_sgpr_count 2
  .amdhsa_user_sgpr_kernarg_segment_ptr 1
  .amdhsa_system_sgpr_workgroup_id_x 1
.end_amdhsa_kernel
'''
PX,PC,PQKV,PWO,PWM,POUT,PDBG,PWS=16,18,20,22,24,26,28,30

def k1(A):
    N_QK,N_VO,N_MOD,N_LN=144,144,36,128
    TOT=N_QK+N_VO+N_MOD+N_LN
    RED=0; STAGE=16384; SILU=40960
    kernel_header(A,'k1_kernel')
    A(f'''
    s_cmp_ge_u32 s2, {TOT}
    s_cbranch_scc1 K1_END
    s_load_dwordx16 s[16:31], s[0:1], 0
    v_and_b32 v1, 63, v0                 ; lane
    v_lshrrev_b32 v2, 6, v0
    v_and_b32 v3, 31, v0                 ; l&31
    v_readfirstlane_b32 s3, v2
    v_bfe_u32 v4, v0, 5, 1               ; h
    v_lshlrev_b32 v5, 4, v1              ; lane*16
    s_waitcnt lgkmcnt(0)
    ''')
    srd(A,32,PQKV,384*1152*2)
    srd(A,40,PWS,WS_USED)
    A(f'''
    s_cmp_ge_u32 s2, {N_QK+N_VO+N_MOD}
    s_cbranch_scc1 K1_LN
    v_mul_u32_u24 v6, 2304, v3
    v_lshl_add_u32 v6, v4, 4, v6
    s_mul_i32 s11, s3, 192
    s_cmp_ge_u32 s2, {N_QK}
    s_cbranch_scc1 K1_NOTQK
    s_mul_i32 s4, s2, 43691
    s_lshr_b32 s4, s4, 19                ; dt
    s_mul_i32 s5, s4, 12
    s_sub_u32 s5, s2, s5                 ; it
    s_mul_i32 s6, s4, 73728
    s_add_u32 s6, s6, s11                ; A soffset
    s_mul_i32 s7, s5, 73728
    s_add_u32 s7, s7, s11
    s_add_u32 s7, s7, 768                ; B soffset
    ''')
    for u in range(6):
        A(f'buffer_load_dwordx4 {vr(16+4*u,4)}, v6, s[32:35], s6 offen offset:{32*u}')
        A(f'buffer_load_dwordx4 {vr(40+4*u,4)}, v6, s[32:35], s7 offen offset:{32*u}')
    for u in range(6):
        A(f's_waitcnt vmcnt({10-2*u})')
        A(f'v_mfma_f32_32x32x16_bf16 v[64:79], {vr(16+4*u,4)}, {vr(40+4*u,4)}, '+('0' if u==0 else 'v[64:79]'))
    A(f'''
    s_mov_b32 s8, {f32(QSCALE)}
    s_mov_b32 s9, s5                     ; ftile
    s_mov_b32 s10, 0
    s_branch K1_RED
K1_NOTQK:
    s_cmp_ge_u32 s2, {N_QK+N_VO}
    s_cbranch_scc1 K1_MOD
    s_sub_u32 s12, s2, {N_QK}
    s_mul_i32 s4, s12, 43691
    s_lshr_b32 s4, s4, 19                ; dt
    s_mul_i32 s5, s4, 12
    s_sub_u32 s5, s12, s5                ; ft
    s_mul_i32 s6, s4, 73728
    s_add_u32 s6, s6, s11
    s_add_u32 s6, s6, 1536
    ''')
    srd(A,36,PWO,384*384*2)
    A(f'''
    s_mov_b32 s13, 768
    s_mov_b32 s8, 1.0
    s_add_u32 s9, s5, 12                 ; ftile
    s_mov_b32 s10, 0
    ''')
    for u in range(6):
        A(f'buffer_load_dwordx4 {vr(16+4*u,4)}, v6, s[32:35], s6 offen offset:{32*u}')
    A(f'''
    s_branch K1_STAGE
K1_MOD:
    s_sub_u32 s5, s2, {N_QK+N_VO}
    s_mov_b32 s4, 0
    ''')
    srd(A,36,PWM,384*2304*2)
    srd(A,44,PC,2*384*2)
    A(f'''
    s_mov_b32 s13, 4608
    s_mov_b32 s8, 1.0
    s_mov_b32 s9, 0
    s_mov_b32 s10, 1
    v_lshlrev_b32 v7, 2, v1
    buffer_load_dword v8, v7, s[44:47], s11 offen
    buffer_load_dword v9, v7, s[44:47], s11 offen offset:768
K1_STAGE:
    v_lshrrev_b32 v10, 2, v1
    v_mul_u32_u24 v10, s13, v10
    v_and_b32 v11, 3, v1
    v_lshl_add_u32 v10, v11, 4, v10      ; voffset
    s_mul_i32 s14, s3, 96
    s_mul_i32 s14, s14, s13
    s_lshl_b32 s15, s5, 6
    s_add_u32 s14, s14, s15
    s_lshl_b32 s15, s13, 4               ; 16 rows
    ''')
    for i in range(6):
        A(f'buffer_load_dwordx4 {vr(80+4*i,4)}, v10, s[36:39], s14 offen')
        if i<5: A('s_add_u32 s14, s14, s15')
    A(f'''
    s_mul_i32 s14, s3, 6144
    s_add_u32 s14, s14, {STAGE}
    v_add_u32 v12, s14, v5
    v_lshlrev_b32 v13, 9, v4             ; (g>>1)=h -> 8*64*h
    v_bfe_u32 v14, v1, 2, 2              ; i>>2
    v_lshl_add_u32 v13, v14, 6, v13
    v_bfe_u32 v14, v1, 4, 1              ; g&1
    v_lshl_add_u32 v13, v14, 5, v13
    v_lshl_add_u32 v13, v11, 3, v13
    v_add_u32 v13, s14, v13
    s_cmp_eq_u32 s10, 0
    s_cbranch_scc1 K1_STAGE2
    s_waitcnt vmcnt(6)
    v_lshlrev_b32 v104, 16, v8
    v_and_b32 v105, 0xffff0000, v8
    v_lshlrev_b32 v106, 16, v9
    v_and_b32 v107, 0xffff0000, v9
    s_mov_b32 s15, {f32(-1.4426950408889634)}
    ''')
    for r in range(4): A(f'v_mul_f32 v{108+r}, s15, v{104+r}')
    for r in range(4): A(f'v_exp_f32 v{108+r}, v{108+r}')
    A('s_nop 0')
    for r in range(4): A(f'v_add_f32 v{108+r}, 1.0, v{108+r}')
    for r in range(4): A(f'v_rcp_f32 v{108+r}, v{108+r}')
    A('s_nop 0')
    for r in range(4): A(f'v_mul_f32 v{104+r}, v{104+r}, v{108+r}')
    A(f'''
    v_cvt_pk_bf16_f32 v8, v104, v105
    v_cvt_pk_bf16_f32 v9, v106, v107
    s_lshl_b32 s15, s3, 9
    s_add_u32 s15, s15, {SILU}
    v_add_u32 v7, s15, v7
    ds_write_b32 v7, v8
    ds_write_b32 v7, v9 offset:256
    ''')
    for r in range(24): A(f'v_mov_b32 v{16+r}, 0')
    A(f'''
    v_lshlrev_b32 v7, 8, v3
    v_lshl_add_u32 v7, v4, 4, v7
    v_add_u32 v7, s15, v7
    v_cmp_gt_u32 vcc, 2, v3
    s_waitcnt lgkmcnt(0)
    s_and_saveexec_b64 s[48:49], vcc
    ''')
    for u in range(6): A(f'ds_read_b128 {vr(16+4*u,4)}, v7 offset:{32*u}')
    A(f'''
    s_mov_b64 exec, s[48:49]
K1_STAGE2:
    ''')
    for i in range(6):
        A(f's_waitcnt vmcnt({5-i})')
        A(f'ds_write_b128 v12, {vr(80+4*i,4)} offset:{1024*i}')
    A('s_waitcnt lgkmcnt(0)')
    for u in range(6):
        A(f'ds_read_b64_tr_b16 {vr(40+4*u,2)}, v13 offset:{1024*u}')
        A(f'ds_read_b64_tr_b16 {vr(42+4*u,2)}, v13 offset:{1024*u+256}')
    for u in range(6):
        A(f's_waitcnt lgkmcnt({10-2*u})')
        A(f'v_mfma_f32_32x32x16_bf16 v[64:79], {vr(16+4*u,4)}, {vr(40+4*u,4)}, '+('0' if u==0 else 'v[64:79]'))
    A(f'''
K1_RED:
    s_lshl_b32 s14, s3, 12
    v_add_u32 v12, s14, v5
    s_nop 15
    ''')
    for a in range(4): A(f'ds_write_b128 v12, {vr(64+4*a,4)} offset:{RED+1024*a}')
    A(f'''
    s_waitcnt lgkmcnt(0)
    s_barrier
    s_cmp_ge_u32 s3, 2
    s_cbranch_scc1 K1_END
    s_lshl_b32 s14, s3, 11
    v_add_u32 v12, s14, v5
    ''')
    for ww in range(4):
        for q in range(2):
            A(f'ds_read_b128 {vr(16+8*ww+4*q,4)}, v12 offset:{RED+4096*ww+1024*q}')
    A('s_waitcnt lgkmcnt(0)')
    for r in range(8):
        A(f'v_add_f32 v{16+r}, v{16+r}, v{24+r}')
        A(f'v_add_f32 v{32+r}, v{32+r}, v{40+r}')
    for r in range(8):
        A(f'v_add_f32 v{16+r}, v{16+r}, v{32+r}')
    A(f'''
    s_cmp_eq_u32 s10, 1
    s_cbranch_scc1 K1_MODOUT
    ''')
    for r in range(8): A(f'v_mul_f32 v{16+r}, s8, v{16+r}')
    for r in range(4): A(f'v_cvt_pk_bf16_f32 v{24+r}, v{16+2*r}, v{17+2*r}')
    A(f'''
    s_mul_i32 s14, s9, 24576
    s_lshl_b32 s15, s4, 11
    s_add_u32 s14, s14, s15
    s_lshl_b32 s15, s3, 10
    s_add_u32 s14, s14, s15
    s_add_u32 s14, s14, {WF_OFF}
    v_permlane32_swap_b32 v24, v26
    v_permlane32_swap_b32 v25, v27
    s_nop 1
    buffer_store_dwordx4 v[24:27], v5, s[40:43], s14 offen
    s_endpgm
K1_MODOUT:
    s_cmp_eq_u32 s3, 1
    s_cbranch_scc1 K1_END
    s_sub_u32 s14, s5, 12
    s_cmp_lt_u32 s14, 12
    s_cselect_b32 s15, 1.0, 0
    v_add_f32 v16, s15, v16
    v_add_f32 v17, s15, v17
    v_lshlrev_b32 v7, 2, v1
    s_lshl_b32 s14, s5, 7
    s_add_u32 s14, s14, {MOD_OFF}
    v_cmp_gt_u32 vcc, 32, v1
    s_and_saveexec_b64 s[48:49], vcc
    buffer_store_dword v16, v7, s[40:43], s14 offen
    buffer_store_dword v17, v7, s[40:43], s14 offen offset:{4608-4096} ; placeholder
    s_endpgm
    ''')
    A.L.pop(); A.L.pop()
    A(f'''
    s_add_u32 s14, s14, 4608
    buffer_store_dword v17, v7, s[40:43], s14 offen
    s_endpgm
K1_LN:
    ''')
    srd(A,44,PX,2048*384*2)
    A(f'''
    s_sub_u32 s4, s2, {N_QK+N_VO+N_MOD}
    s_lshl_b32 s4, s4, 4
    s_lshl_b32 s5, s3, 2
    s_add_u32 s4, s4, s5
    v_lshrrev_b32 v6, 4, v1              ; r
    v_and_b32 v7, 15, v1                 ; c
    v_mul_u32_u24 v8, 768, v6
    v_lshl_add_u32 v8, v7, 4, v8
    s_mul_i32 s5, s4, 768
    buffer_load_dwordx4 v[16:19], v8, s[44:47], s5 offen
    buffer_load_dwordx4 v[20:23], v8, s[44:47], s5 offen offset:256
    buffer_load_dwordx4 v[24:27], v8, s[44:47], s5 offen offset:512
    s_lshr_b32 s6, s4, 5
    s_mul_i32 s6, s6, 24576
    s_and_b32 s7, s4, 31
    s_lshl_b32 s7, s7, 4
    s_add_u32 s6, s6, s7
    s_add_u32 s6, s6, {XF_OFF}
    v_lshlrev_b32 v9, 9, v7
    v_lshl_add_u32 v9, v6, 4, v9
    s_waitcnt vmcnt(0)
    ''')
    for r in range(12):
        A(f'v_lshlrev_b32 v{32+2*r}, 16, v{16+r}')
        A(f'v_and_b32 v{33+2*r}, 0xffff0000, v{16+r}')
    A('v_add_f32 v10, v32, v33')
    A('v_add_f32 v11, v34, v35')
    for r in range(2,12):
        A(f'v_add_f32 v10, v10, v{32+2*r}')
        A(f'v_add_f32 v11, v11, v{33+2*r}')
    A('v_add_f32 v10, v10, v11')
    for sh in (8,4,2,1):
        A('s_nop 1')
        A(f'v_add_f32_dpp v10, v10, v10 row_ror:{sh} row_mask:0xf bank_mask:0xf')
    A(f'v_mul_f32 v10, {f32(1.0/384)}, v10')
    for r in range(24): A(f'v_sub_f32 v{32+r}, v{32+r}, v10')
    A('v_mul_f32 v11, v32, v32')
    A('v_mul_f32 v12, v33, v33')
    for r in range(1,12):
        A(f'v_fmac_f32 v11, v{32+2*r}, v{32+2*r}')
        A(f'v_fmac_f32 v12, v{33+2*r}, v{33+2*r}')
    A('v_add_f32 v11, v11, v12')
    for sh in (8,4,2,1):
        A('s_nop 1')
        A(f'v_add_f32_dpp v11, v11, v11 row_ror:{sh} row_mask:0xf bank_mask:0xf')
    A(f'''
    v_mov_b32 v12, {f32(1e-5)}
    v_fmac_f32 v12, {f32(1.0/384)}, v11
    v_rsq_f32 v12, v12
    s_nop 0
    ''')
    for r in range(24): A(f'v_mul_f32 v{32+r}, v{32+r}, v12')
    for r in range(12): A(f'v_cvt_pk_bf16_f32 v{16+r}, v{32+2*r}, v{33+2*r}')
    A(f'''
    buffer_store_dwordx4 v[16:19], v9, s[40:43], s6 offen
    s_add_u32 s6, s6, 8192
    buffer_store_dwordx4 v[20:23], v9, s[40:43], s6 offen
    s_add_u32 s6, s6, 8192
    buffer_store_dwordx4 v[24:27], v9, s[40:43], s6 offen
K1_END:
    s_endpgm
    ''')
    return dict(name='k1_kernel',grid=TOT,block=256,lds=43008,vgpr=112,sgpr=56,accum=112)

def k2(A):
    MODL=0; AL=4096
    kernel_header(A,'k2_kernel')
    A(f'''
    s_cmp_ge_u32 s2, 256
    s_cbranch_scc1 K2_END
    s_load_dwordx2 s[30:31], s[0:1], 56
    v_and_b32 v1, 63, v0
    v_lshrrev_b32 v2, 6, v0
    v_lshlrev_b32 v5, 4, v1              ; lane*16
    v_readfirstlane_b32 s3, v2
    v_bfe_u32 v4, v0, 5, 1               ; h
    v_lshlrev_b32 v6, 4, v0              ; tid*16
    s_and_b32 s4, s2, 7
    s_lshr_b32 s5, s2, 3
    s_lshl_b32 s4, s4, 2
    s_and_b32 s6, s5, 3
    s_add_u32 s4, s4, s6                 ; rb
    s_lshr_b32 s5, s5, 2                 ; cb
    s_lshr_b32 s6, s4, 4                 ; batch
    s_mul_i32 s7, s6, 4608
    s_mul_i32 s8, s4, 49152
    s_mul_i32 s9, s3, 6144
    s_add_u32 s8, s8, s9
    s_add_u32 s8, s8, {XF_OFF}
    s_add_u32 s9, s8, 24576              ; tile1
    s_mul_i32 s10, s5, 3
    s_add_u32 s10, s10, s3               ; ftile
    s_mul_i32 s11, s10, 24576
    s_add_u32 s11, s11, {WF_OFF}
    s_waitcnt lgkmcnt(0)
    ''')
    srd(A,40,PWS,WS_USED)
    A(f'buffer_load_dwordx4 v[8:11], v6, s[40:43], s7 offen')
    for i in range(6):
        for tt in range(2):
            so='s8' if tt==0 else 's9'
            if i<4: A(f'buffer_load_dwordx4 {vr(16+8*i+4*tt,4)}, v5, s[40:43], {so} offen offset:{1024*i}')
            else:
                if i==4 and tt==0: A('s_add_u32 s8, s8, 4096\ns_add_u32 s9, s9, 4096')
                A(f'buffer_load_dwordx4 {vr(16+8*i+4*tt,4)}, v5, s[40:43], {so} offen offset:{1024*(i-4)}')
    A(f'''
    s_cmp_eq_u32 s3, 3
    s_cbranch_scc1 K2_NOW
    ''')
    for s in range(24):
        A(f'buffer_load_dwordx4 {vr(128+4*s,4)}, v5, s[40:43], s11 offen offset:{1024*(s%4)}')
        if s%4==3 and s<23: A('s_add_u32 s11, s11, 4096')
    A(f'''
    s_waitcnt vmcnt(36)
    ds_write_b128 v6, v[8:11] offset:{MODL}
    s_waitcnt vmcnt(24) lgkmcnt(0)
    s_branch K2_A
K2_NOW:
    s_waitcnt vmcnt(12)
    ds_write_b128 v6, v[8:11] offset:{MODL}
    s_waitcnt vmcnt(0) lgkmcnt(0)
K2_A:
    s_barrier
    s_mul_i32 s12, s3, 384
    v_lshlrev_b32 v7, 5, v4
    v_add_u32 v7, s12, v7
    s_mul_i32 s12, s3, 6144
    v_add_u32 v12, s12, v5
    ''')
    for i in range(6):
        cb=64+16*(i%2)
        A(f'ds_read_b128 {vr(cb,4)}, v7 offset:{MODL+64*i}')
        A(f'ds_read_b128 {vr(cb+4,4)}, v7 offset:{MODL+64*i+16}')
        A(f'ds_read_b128 {vr(cb+8,4)}, v7 offset:{MODL+1536+64*i}')
        A(f'ds_read_b128 {vr(cb+12,4)}, v7 offset:{MODL+1536+64*i+16}')
        first=True
        for tt in range(2):
            src=16+8*i+4*tt
            t=96+8*tt
            for r in range(4):
                A(f'v_lshlrev_b32 v{t+2*r}, 16, v{src+r}')
                A(f'v_and_b32 v{t+2*r+1}, 0xffff0000, v{src+r}')
            if first:
                A('s_waitcnt lgkmcnt(0)'); first=False
            for r in range(4):
                A(f'v_pk_fma_f32 {vr(t+2*r,2)}, {vr(t+2*r,2)}, {vr(cb+8+2*r,2)}, {vr(cb+2*r,2)}')
            for r in range(4):
                A(f'v_cvt_pk_bf16_f32 v{src+r}, v{t+2*r}, v{t+2*r+1}')
            A(f'ds_write_b128 v12, {vr(src,4)} offset:{AL+24576*tt+1024*i}')
    A(f'''
    s_waitcnt lgkmcnt(0)
    s_barrier
    s_cmp_eq_u32 s3, 3
    s_cbranch_scc1 K2_END
    s_cmp_ge_u32 s5, 4
    s_cbranch_scc1 K2_V
    ''')
    def mm(isT):
        D=4
        for s in range(D-1):
            for tt in range(2):
                A(f'ds_read_b128 {vr(16+8*(s%D)+4*tt,4)}, v5 offset:{AL+24576*tt+1024*s}')
        for s in range(24):
            sn=s+D-1
            if sn<24:
                for tt in range(2):
                    A(f'ds_read_b128 {vr(16+8*(sn%D)+4*tt,4)}, v5 offset:{AL+24576*tt+1024*sn}')
            rem=min(24-1-s,D-1)*2
            A(f's_waitcnt vmcnt({23-s}) lgkmcnt({rem})')
            for tt in range(2):
                acc=vr(64+16*tt,16); hf=vr(16+8*(s%D)+4*tt,4); wf=vr(128+4*s,4)
                c='0' if s==0 else acc
                if isT: A(f'v_mfma_f32_32x32x16_bf16 {acc}, {wf}, {hf}, {c}')
                else:   A(f'v_mfma_f32_32x32x16_bf16 {acc}, {hf}, {wf}, {c}')
    mm(True)
    A(f'''
    s_lshl_b32 s12, s10, 7               ; ftile*32*4
    v_lshlrev_b32 v7, 4, v4
    v_add_u32 v7, s12, v7
    ''')
    for a in range(4): A(f'ds_read_b128 {vr(96+4*a,4)}, v7 offset:{MODL+1536+32*a}')
    A(f'''
    s_mul_i32 s12, s4, 49152
    s_lshl_b32 s13, s10, 11
    s_add_u32 s12, s12, s13
    s_add_u32 s12, s12, {TF_OFF}
    s_add_u32 s13, s12, 24576
    s_nop 7
    s_waitcnt lgkmcnt(0)
    ''')
    for tt in range(2):
        for r in range(8):
            A(f'v_pk_mul_f32 {vr(64+16*tt+2*r,2)}, {vr(64+16*tt+2*r,2)}, {vr(96+2*r,2)}')
        for r in range(8):
            A(f'v_cvt_pk_bf16_f32 v{16+8*tt+r}, v{64+16*tt+2*r}, v{64+16*tt+2*r+1}')
        A('s_nop 1')
        for hf in range(2):
            b=16+8*tt+4*hf
            A(f'v_permlane32_swap_b32 v{b}, v{b+2}')
            A(f'v_permlane32_swap_b32 v{b+1}, v{b+3}')
        A('s_nop 1')
        for hf in range(2):
            A(f'buffer_store_dwordx4 {vr(16+8*tt+4*hf,4)}, v5, s[40:43], s{12+tt} offen offset:{1024*hf}')
    A('s_endpgm\nK2_V:')
    mm(False)
    A(f'''
    s_lshr_b32 s12, s4, 1
    s_mul_i32 s12, s12, 12
    s_add_u32 s12, s12, s10
    s_sub_u32 s12, s12, 12
    s_lshl_b32 s12, s12, 13
    s_and_b32 s13, s4, 1
    s_lshl_b32 s13, s13, 12
    s_add_u32 s12, s12, s13
    s_add_u32 s12, s12, {VF_OFF}
    s_nop 7
    ''')
    for tt in range(2):
        for r in range(8):
            A(f'v_cvt_pk_bf16_f32 v{16+8*tt+r}, v{64+16*tt+2*r}, v{64+16*tt+2*r+1}')
        for hf in range(2):
            A(f'buffer_store_dwordx4 {vr(16+8*tt+4*hf,4)}, v5, s[40:43], s12 offen offset:{2048*tt+1024*hf}')
    A('K2_END:\ns_endpgm')
    return dict(name='k2_kernel',grid=256,block=256,lds=4096+49152,vgpr=224,sgpr=48,accum=224)

def k3(A):
    ML=0; LL=1024; TL=2048; PL=2048
    kernel_header(A,'k3_kernel')
    A(f'''
    s_cmp_ge_u32 s2, 256
    s_cbranch_scc1 K3_END
    s_load_dwordx2 s[30:31], s[0:1], 56
    v_and_b32 v1, 63, v0
    v_lshrrev_b32 v2, 6, v0
    v_lshlrev_b32 v5, 4, v1              ; lane*16
    v_readfirstlane_b32 s3, v2
    v_bfe_u32 v4, v0, 5, 1               ; h
    v_and_b32 v3, 31, v0
    s_and_b32 s4, s2, 7
    s_lshr_b32 s5, s2, 3                 ; j
    s_lshr_b32 s6, s4, 2                 ; b
    s_and_b32 s7, s4, 3
    s_lshl_b32 s7, s7, 1
    s_and_b32 s8, s5, 1
    s_add_u32 s7, s7, s8                 ; kb
    s_lshr_b32 s8, s5, 1                 ; qt
    s_lshl_b32 s9, s6, 4
    s_add_u32 s9, s9, s8
    s_mul_i32 s10, s9, 49152
    s_mul_i32 s11, s3, 12288
    s_add_u32 s10, s10, s11
    s_add_u32 s10, s10, {TF_OFF}
    s_lshl_b32 s12, s6, 3
    s_add_u32 s12, s12, s7
    s_lshl_b32 s13, s12, 2
    s_add_u32 s13, s13, s3
    s_mul_i32 s13, s13, 24576
    s_add_u32 s13, s13, {XF_OFF}
    s_mul_i32 s14, s12, 12
    s_mul_i32 s15, s3, 3
    s_add_u32 s14, s14, s15
    s_lshl_b32 s14, s14, 13
    s_add_u32 s14, s14, {VF_OFF}         ; V' frags
    s_waitcnt lgkmcnt(0)
    ''')
    srd(A,40,PWS,WS_USED)
    for g in range(3):
        A(f's_add_u32 m0, s11, {TL+4096*g}')
        A('s_nop 0')
        for i in range(4):
            A(f'buffer_load_dwordx4 v5, s[40:43], s10 offen offset:{1024*i} lds')
        if g<2: A('s_add_u32 s10, s10, 4096')
    KF=128
    for s in range(24):
        A(f'buffer_load_dwordx4 {vr(KF+4*s,4)}, v5, s[40:43], s13 offen offset:{1024*(s%4)}')
        if s%4==3 and s<23: A('s_add_u32 s13, s13, 4096')
    for s in range(24):
        A(f'buffer_load_dwordx4 {ar(4*s,4)}, v5, s[40:43], s14 offen offset:{1024*(s%4)}')
        if s%4==3 and s<23: A('s_add_u32 s14, s14, 4096')
    A('''
    s_waitcnt vmcnt(48)
    s_barrier
    ''')
    D=4
    for s in range(D-1):
        for q in range(2):
            A(f'ds_read_b128 {vr(16+8*(s%D)+4*q,4)}, v5 offset:{TL+24576*q+1024*s}')
    SA=64
    for s in range(24):
        sn=s+D-1
        if sn<24:
            for q in range(2):
                A(f'ds_read_b128 {vr(16+8*(sn%D)+4*q,4)}, v5 offset:{TL+24576*q+1024*sn}')
        rem=min(24-1-s,D-1)*2
        A(f's_waitcnt vmcnt({24+23-s}) lgkmcnt({rem})')
        for q in range(2):
            acc=vr(SA+16*q,16)
            A(f'v_mfma_f32_32x32x16_bf16 {acc}, {vr(KF+4*s,4)}, {vr(16+8*(s%D)+4*q,4)}, '+('0' if s==0 else acc))
    A(f'''
    v_lshlrev_b32 v6, 2, v3
    s_lshl_b32 s15, s3, 8
    v_add_u32 v7, s15, v6
    s_nop 9
    ''')
    for q in range(2):
        b=SA+16*q
        A(f'v_max3_f32 v{8+q}, v{b}, v{b+1}, v{b+2}')
        for r in range(3,15,2):
            A(f'v_max3_f32 v{8+q}, v{8+q}, v{b+r}, v{b+r+1}')
        A(f'v_max_f32 v{8+q}, v{8+q}, v{b+15}')
    A(f'''
    v_mov_b32 v10, v8
    v_mov_b32 v11, v9
    s_nop 1
    v_permlane32_swap_b32 v8, v10
    v_permlane32_swap_b32 v9, v11
    s_nop 1
    v_max_f32 v8, v8, v10
    v_max_f32 v9, v9, v11
    ds_write_b32 v7, v8 offset:{ML}
    ds_write_b32 v7, v9 offset:{ML+128}
    s_waitcnt lgkmcnt(0)
    s_barrier
    ''')
    for ww in range(4):
        for q in range(2):
            A(f'ds_read_b32 v{16+4*q+ww}, v6 offset:{ML+256*ww+128*q}')
    A('s_waitcnt lgkmcnt(0)')
    for q in range(2):
        A(f'v_max3_f32 v{8+q}, v{16+4*q}, v{17+4*q}, v{18+4*q}')
        A(f'v_max_f32 v{8+q}, v{8+q}, v{19+4*q}')
    for q in range(2):
        b=SA+16*q
        for r in range(16): A(f'v_sub_f32 v{b+r}, v{b+r}, v{8+q}')
        for r in range(16): A(f'v_exp_f32 v{b+r}, v{b+r}')
    A('s_nop 0')
    A(f'''
    s_lshl_b32 s15, s3, 11
    v_add_u32 v12, s15, v5
    ''')
    for q in range(2):
        b=SA+16*q
        for r in range(8): A(f'v_cvt_pk_bf16_f32 v{16+8*q+r}, v{b+2*r}, v{b+2*r+1}')
        for hf in range(2):
            A(f'ds_write_b128 v12, {vr(16+8*q+4*hf,4)} offset:{PL+8192*q+1024*hf}')
        A(f'v_add_f32 v{10+q}, v{b}, v{b+1}')
        for r in range(2,16): A(f'v_add_f32 v{10+q}, v{10+q}, v{b+r}')
    A(f'''
    v_mov_b32 v13, v10
    v_mov_b32 v14, v11
    s_nop 1
    v_permlane32_swap_b32 v10, v13
    v_permlane32_swap_b32 v11, v14
    s_nop 1
    v_add_f32 v10, v10, v13
    v_add_f32 v11, v11, v14
    ds_write_b32 v7, v10 offset:{LL}
    ds_write_b32 v7, v11 offset:{LL+128}
    s_waitcnt lgkmcnt(0)
    s_barrier
    ''')
    def pf(ks,q):
        i=ks*2+q
        return (16+4*i) if i<8 else (64+4*(i-8))
    for ks in range(8):
        for q in range(2):
            A(f'ds_read_b128 {vr(pf(ks,q),4)}, v5 offset:{PL+8192*q+1024*ks}')
    OA=128
    for ks in range(8):
        A(f's_waitcnt vmcnt({23-(16+ks)}) lgkmcnt({min(15,14-2*ks)})')
        for dt in range(3):
            for q in range(2):
                acc=vr(OA+16*(dt*2+q),16)
                A(f'v_mfma_f32_32x32x16_bf16 {acc}, {ar(4*(dt*8+ks),4)}, {vr(pf(ks,q),4)}, '+('0' if ks==0 else acc))
    A(f'''
    s_mul_i32 s10, s9, 48*8192
    s_mul_i32 s11, s3, 6*8192
    s_add_u32 s10, s10, s11
    s_lshl_b32 s11, s7, 10
    s_add_u32 s10, s10, s11
    s_add_u32 s10, s10, {OP_OFF}
    s_cmp_lg_u32 s3, 0
    s_cbranch_scc1 K3_NOST
    v_lshlrev_b32 v13, 2, v1             ; lane*4 = (q*32+l31)*4
    ds_read_b32 v16, v13 offset:{LL}
    ds_read_b32 v17, v13 offset:{LL+256}
    ds_read_b32 v18, v13 offset:{LL+512}
    ds_read_b32 v19, v13 offset:{LL+768}
    v_cmp_eq_u32 vcc, 1, v4
    v_lshlrev_b32 v13, 6, v1             ; lane*64
    s_lshl_b32 s11, s9, 12               ; q64*64*64
    s_lshl_b32 s12, s7, 3
    v_cndmask_b32 v14, v8, v9, vcc
    s_add_u32 s11, s11, s12
    s_add_u32 s11, s11, {ST_OFF}
    s_waitcnt lgkmcnt(0)
    v_add_f32 v16, v16, v17
    v_add_f32 v18, v18, v19
    v_add_f32 v15, v16, v18
    buffer_store_dwordx2 v[14:15], v13, s[40:43], s11 offen
K3_NOST:
    s_nop 7
    ''')
    for dt in range(3):
        for q in range(2):
            b=OA+16*(dt*2+q)
            o=16+8*((dt*2+q)%4)
            for r in range(8): A(f'v_cvt_pk_bf16_f32 v{o+r}, v{b+2*r}, v{b+2*r+1}')
            for hf in range(2):
                off=(q*24+2*dt+hf)*8192
                A(f's_add_u32 s11, s10, {off}')
                A(f'buffer_store_dwordx4 {vr(o+4*hf,4)}, v5, s[40:43], s11 offen')
    A('K3_END:\ns_endpgm')
    return dict(name='k3_kernel',grid=256,block=256,lds=2048+49152,vgpr=224+96,sgpr=48,accum=224)

def k4(A):
    kernel_header(A,'k4_kernel')
    A(f'''
    s_cmp_ge_u32 s2, 256
    s_cbranch_scc1 K4_END
    s_load_dwordx16 s[16:31], s[0:1], 0
    v_and_b32 v1, 63, v0
    v_lshrrev_b32 v2, 6, v0
    v_lshlrev_b32 v5, 4, v1
    v_readfirstlane_b32 s3, v2
    v_bfe_u32 v4, v0, 5, 1
    v_and_b32 v3, 31, v0
    s_and_b32 s4, s2, 7
    s_lshr_b32 s5, s2, 3
    s_lshl_b32 s4, s4, 3
    s_lshr_b32 s6, s5, 2
    s_add_u32 s4, s4, s6                 ; q32
    s_and_b32 s5, s5, 3
    s_mul_i32 s5, s5, 6
    s_add_u32 s5, s5, s3                 ; s (16-d group)
    s_mul_i32 s6, s4, 24
    s_add_u32 s6, s6, s5
    s_lshl_b32 s6, s6, 13
    s_add_u32 s6, s6, {OP_OFF}
    s_add_u32 s7, s6, 4096
    s_lshl_b32 s8, s4, 11
    s_add_u32 s8, s8, {ST_OFF}
    v_lshlrev_b32 v6, 6, v3
    s_lshr_b32 s9, s4, 5                 ; batch
    s_mul_i32 s9, s9, 4608
    s_lshl_b32 s10, s5, 6
    s_add_u32 s9, s9, s10
    s_add_u32 s9, s9, {MOD_OFF+3072}
    v_lshlrev_b32 v7, 4, v4
    v_mul_u32_u24 v8, 768, v3
    v_lshl_add_u32 v8, v4, 3, v8
    s_mul_i32 s10, s4, 24576
    s_lshl_b32 s11, s5, 5
    s_add_u32 s10, s10, s11
    s_waitcnt lgkmcnt(0)
    ''')
    srd(A,40,PWS,WS_USED)
    srd(A,44,PX,2048*384*2)
    srd(A,48,POUT,2048*384*2)
    for i in range(4): A(f'buffer_load_dwordx4 {vr(16+4*i,4)}, v6, s[40:43], s8 offen offset:{16*i}')
    for p in range(8): A(f'buffer_load_dwordx4 {vr(48+4*p,4)}, v5, s[40:43], s{6+p//4} offen offset:{1024*(p%4)}')
    A(f'''
    buffer_load_dwordx2 v[32:33], v8, s[44:47], s10 offen
    buffer_load_dwordx2 v[34:35], v8, s[44:47], s10 offen offset:16
    buffer_load_dwordx4 v[36:39], v7, s[40:43], s9 offen
    buffer_load_dwordx4 v[40:43], v7, s[40:43], s9 offen offset:32
    s_waitcnt vmcnt(12)
    v_max3_f32 v9, v16, v18, v20
    v_max3_f32 v9, v9, v22, v24
    v_max3_f32 v9, v9, v26, v28
    v_max_f32 v9, v9, v30
    ''')
    for p in range(8): A(f'v_sub_f32 v{16+2*p}, v{16+2*p}, v9')
    for p in range(8): A(f'v_exp_f32 v{16+2*p}, v{16+2*p}')
    A('s_nop 0')
    A('v_mul_f32 v10, v16, v17')
    for p in range(1,8): A(f'v_fmac_f32 v10, v{16+2*p}, v{17+2*p}')
    A('v_rcp_f32 v10, v10\ns_nop 0')
    for p in range(8): A(f'v_mul_f32 v{16+2*p}, v{16+2*p}, v10')
    for p in range(8):
        A(f's_waitcnt vmcnt({11-p})')
        for r in range(4):
            A(f'v_lshlrev_b32 v11, 16, v{48+4*p+r}')
            A(f'v_and_b32 v12, 0xffff0000, v{48+4*p+r}')
            if p==0:
                A(f'v_mul_f32 v{80+2*r}, v16, v11')
                A(f'v_mul_f32 v{81+2*r}, v16, v12')
            else:
                A(f'v_fmac_f32 v{80+2*r}, v{16+2*p}, v11')
                A(f'v_fmac_f32 v{81+2*r}, v{16+2*p}, v12')
    A('s_waitcnt vmcnt(0)')
    for r in range(4):
        A(f'v_lshlrev_b32 v11, 16, v{32+r}')
        A(f'v_and_b32 v12, 0xffff0000, v{32+r}')
        A(f'v_fmac_f32 v11, v{36+2*r}, v{80+2*r}')
        A(f'v_fmac_f32 v12, v{37+2*r}, v{81+2*r}')
        A(f'v_cvt_pk_bf16_f32 v{44+r}, v11, v12')
    A(f'''
    buffer_store_dwordx2 v[44:45], v8, s[48:51], s10 offen
    buffer_store_dwordx2 v[46:47], v8, s[48:51], s10 offen offset:16
K4_END:
    s_endpgm
    ''')
    return dict(name='k4_kernel',grid=256,block=384,lds=0,vgpr=88,sgpr=56,accum=88)

HEADER='''; Kernarg layout for this problem (64 bytes, ptrs only, base s[0:1]):
'''
def main():
    A=Asm()
    ks=[k1(A),k2(A),k3(A),k4(A)]
    out=HEADER
    for k in ks:
        out+=f"; @launch kernel={k['name']} grid=({k['grid']},1,1) block=({k['block']},1,1) lds={k['lds']}\n"
    out+='.amdgcn_target "amdgcn-amd-amdhsa--gfx950"\n.text\n'
    out+=A.text()
    out+='.section .rodata,"a"\n'
    for k in ks:
        out+='.p2align 6\n'+kd(k['name'],k['vgpr'],k['sgpr'],k['accum'])
    open(sys.argv[1] if len(sys.argv)>1 else 'standalone__dit_adaln_block__diffusion.s','w').write(out)
main()
```
